```python
import torch

def _softmax(x, axis=-1):
    return torch.softmax(x, dim=axis)
def _gelu(x):
    return torch.nn.functional.gelu(x, approximate="tanh")
def _silu(x):
    return torch.nn.functional.silu(x)
def _sigmoid(x):
    return torch.sigmoid(x)
def _layernorm(x, axis=-1, eps=1e-5):
    m = x.mean(dim=axis, keepdim=True)
    v = x.var(dim=axis, keepdim=True, unbiased=False)
    return (x - m) / torch.sqrt(v + eps)
def _scatter_add(tgt, idx, src, axis=0):
    return tgt.clone().index_add_(axis, idx, src)
def _segment_sum(src, seg, n):
    out = torch.zeros((n,) + src.shape[1:], dtype=src.dtype)
    return out.index_add_(0, seg, src)
def _pad(x, pw):
    flat = tuple(v for pair in reversed(pw) for v in pair)
    return torch.nn.functional.pad(x, flat)

kernel_name = 'concat_heads__ssm_conv_h3__grouped_kv_mqa__prompt'

def setup_inputs():

    _w = (lambda a: (lambda t: t.to(torch.bfloat16) if t.is_floating_point() else t)(torch.as_tensor(a)))
    def _A_setup():
        B, S, D = 1, 2048, 448
        ks = 4
        return {
            "q": _w((lambda *s: torch.randn(*s, dtype=torch.bfloat16) * 0.05)(B, S, D)),
            "k": _w((lambda *s: torch.randn(*s, dtype=torch.bfloat16) * 0.2)(B, S, D)),
            "v": _w((lambda *s: torch.randn(*s, dtype=torch.bfloat16) * 0.2)(B, S, D)),
            "shift_k": _w((lambda *s: torch.randn(*s, dtype=torch.bfloat16) * 0.2)(D, ks) * 0.5),
            "ssm_k": _w((lambda *s: torch.randn(*s, dtype=torch.bfloat16) * 0.4)(D, S) * (1.0 / S ** 0.5)),
            "ssm_D": _w((lambda *s: torch.randn(*s, dtype=torch.bfloat16) * 0.2)(D)),
        }
    _A_in = _A_setup()

    def _B_setup():
        B, S, D, H = 1, 2048, 448, 16
        Dh = D // H
        return {
            "x": _w((lambda *s: torch.randn(*s, dtype=torch.bfloat16) * 0.05)(B, S, D)),
            "wq": _w((lambda *s: torch.randn(*s, dtype=torch.bfloat16) * 0.8)(D, H * Dh)),
            "wk": _w((lambda *s: torch.randn(*s, dtype=torch.bfloat16) * 0.8)(D, Dh)),
            "wv": _w((lambda *s: torch.randn(*s, dtype=torch.bfloat16) * 0.05)(D, Dh)),
            "wo": _w((lambda *s: torch.randn(*s, dtype=torch.bfloat16) * 0.05)(H * Dh, D)),
        }
    _B_in = _B_setup()

    return {
        "A_q": _A_in["q"],
        "A_k": _A_in["k"],
        "A_v": _A_in["v"],
        "A_shift_k": _A_in["shift_k"],
        "A_ssm_k": _A_in["ssm_k"],
        "A_ssm_D": _A_in["ssm_D"],
        "B_x": _B_in["x"],
        "B_wq": _B_in["wq"],
        "B_wk": _B_in["wk"],
        "B_wv": _B_in["wv"],
        "B_wo": _B_in["wo"],
    }

def reference(A_q, A_k, A_v, A_shift_k, A_ssm_k, A_ssm_D, B_x, B_wq, B_wk, B_wv, B_wo):
    def _A_ref(q, k, v, shift_k, ssm_k, ssm_D):
        B, S, D = q.shape
        ks = shift_k.shape[-1]
        k_pad = _pad(k, ((0, 0), (ks - 1, 0), (0, 0)))
        k_shift = torch.zeros_like(k)
        for t in range(ks):
            k_shift = k_shift + k_pad[:, t:t + S, :] * shift_k[:, ks - 1 - t][None, None, :]
        kv = k_shift * v
        L = 2 * S
        kv_pad = _pad(kv, ((0, 0), (0, S), (0, 0)))
        kf_pad = _pad(ssm_k, ((0, 0), (0, S)))
        kv_f = (lambda x, axes=(-2,-1): torch.fft.rfft2(x.float(), dim=axes))(kv_pad[:, None, :, :], axes=(1, 2))
        kf_f = (lambda x, axes=(-2,-1): torch.fft.rfft2(x.float(), dim=axes))(kf_pad[:, None, :], axes=(1, 2))
        kf_f = (lambda x, *d: x.permute(*d))(kf_f, 1, 2, 0)
        y_f = kv_f * kf_f[None, :, :, :]
        y = (lambda x, s, axes=(-2,-1): torch.fft.irfft2(x, s=s, dim=axes).to(torch.bfloat16))(y_f, (1, L), axes=(1, 2))[:, 0, :S, :]
        y = y + kv * ssm_D[None, None, :]
        return q * y

    def _B_ref(x, wq, wk, wv, wo):
        B, S, D = x.shape
        H = 16
        Dh = D // H
        q = (lambda x, *d: x.permute(*d))((x @ wq).reshape(B, S, H, Dh), 0, 2, 1, 3)
        k = x @ wk
        v = x @ wv
        scores = torch.einsum("bhqd,bkd->bhqk", q, k) * (Dh ** -0.5)
        p = _softmax(scores, axis=-1)
        o = torch.einsum("bhqk,bkd->bhqd", p, v)
        return (lambda x, *d: x.permute(*d))(o, 0, 2, 1, 3).reshape(B, S, H * Dh) @ wo

    a = _A_ref(A_q, A_k, A_v, A_shift_k, A_ssm_k, A_ssm_D)
    b = _B_ref(B_x, B_wq, B_wk, B_wv, B_wo)
    return torch.concatenate([a, b], axis=-1)
```

```python
import re

class Asm:
    def __init__(self):
        self.lines = []
    def __call__(self, s):
        for l in s.strip("\n").split("\n"):
            l = l.rstrip()
            if l.strip():
                self.lines.append(l if l.strip().endswith(":") and not l.startswith(" ") else "    " + l.strip())
    def label(self, n):
        self.lines.append(n + ":")
    def comment(self, s):
        self.lines.append("    ; " + s)
    def text(self):
        return "\n".join(self.lines) + "\n"

def vr(a, n=1):
    return f"v{a}" if n == 1 else f"v[{a}:{a+n-1}]"
def sr(a, n=1):
    return f"s{a}" if n == 1 else f"s[{a}:{a+n-1}]"

REG = re.compile(r"^(-|abs\()?([vsa])(\d+|\[(\d+):(\d+)\])\)?$")
def regs(tok):
    tok = tok.strip()
    if tok in ("vcc",): return {("s", 106), ("s", 107)}
    if tok == "vcc_lo": return {("s", 106)}
    if tok == "vcc_hi": return {("s", 107)}
    if tok == "exec": return {("s", 126), ("s", 127)}
    if tok == "exec_lo": return {("s", 126)}
    if tok == "exec_hi": return {("s", 127)}
    if tok == "m0": return {("s", 124)}
    m = REG.match(tok)
    if not m: return set()
    k = m.group(2)
    if m.group(4) is not None:
        return {(k, i) for i in range(int(m.group(4)), int(m.group(5)) + 1)}
    return {(k, int(m.group(3)))}

TRANS = ("v_exp_", "v_log_", "v_rcp_", "v_rsq_", "v_sqrt_", "v_sin_", "v_cos_")
def parse(line):
    s = line.split(";")[0].strip()
    if not s or s.endswith(":") or s.startswith("."):
        return None
    parts = s.split(None, 1)
    mn = parts[0]
    ops = []
    if len(parts) > 1:
        ops = [o.strip() for o in re.split(r",(?![^\[]*\])", parts[1])]
        last = ops[-1].split()
        mods = last[1:]
        ops[-1] = last[0] if last else ""
    else:
        mods = []
    d = dict(mn=mn, ops=ops, mods=mods, line=s)
    W, R = set(), set()
    if mn.startswith(("v_mfma", "v_smfmac")):
        d["cls"] = "mfma"
        W = regs(ops[0]); d["A"] = regs(ops[1]); d["B"] = regs(ops[2])
        if mn.startswith("v_smfmac"):
            d["C"] = set(W); d["I"] = regs(ops[3])
        else:
            d["C"] = regs(ops[3]); d["I"] = set()
        R = d["A"] | d["B"] | d["C"] | d["I"]
        d["passes"] = 8 if "32x32" in mn else 4
    elif mn.startswith("v_cmp"):
        d["cls"] = "valu"; W = regs(ops[0])
        for o in ops[1:]: R |= regs(o)
    elif mn.startswith(("v_readfirstlane", "v_readlane")):
        d["cls"] = "valu"; W = regs(ops[0])
        for o in ops[1:]: R |= regs(o)
    elif mn.startswith("v_permlane"):
        d["cls"] = "valu"; W = regs(ops[0]) | regs(ops[1]); R = set(W)
    elif mn.startswith("v_"):
        d["cls"] = "valu"; W = regs(ops[0])
        for o in ops[1:]: R |= regs(o)
        if mn.startswith(("v_fmac", "v_pk_fmac")): R |= W
        if mn.startswith("v_cndmask") and len(ops) == 3: R |= regs("vcc")
        if mn.startswith(("v_add_co", "v_sub_co", "v_addc_co")): W |= regs(ops[1])
    elif mn.startswith("ds_"):
        d["cls"] = "ds"
        if mn.startswith(("ds_read", "ds_bpermute", "ds_permute")) or "_rtn" in mn:
            W = regs(ops[0])
            for o in ops[1:]: R |= regs(o)
        else:
            for o in ops: R |= regs(o)
    elif mn.startswith(("buffer_", "global_")):
        d["cls"] = "vmem"
        if "load" in mn and "lds" not in mods and "_lds_" not in mn:
            W = regs(ops[0])
            for o in ops[1:]: R |= regs(o)
        else:
            for o in ops: R |= regs(o)
            if "lds" in mods or "_lds_" in mn: R |= regs("m0"); d["dma"] = True
            if "store" in mn:
                d["stdata"] = regs(ops[0]) if mn.startswith("buffer_") else regs(ops[1])
                d["wide"] = ("x3" in mn or "x4" in mn)
    elif mn.startswith("s_"):
        d["cls"] = "salu"
        if mn.startswith(("s_cmp", "s_cbranch", "s_branch", "s_waitcnt", "s_barrier", "s_nop", "s_setprio", "s_sleep", "s_endpgm", "s_bitcmp")):
            for o in ops: R |= regs(o)
        else:
            W = regs(ops[0])
            for o in ops[1:]: R |= regs(o)
            if "saveexec" in mn: W |= regs("exec")
    else:
        raise ValueError("unknown instr " + s)
    d["W"], d["R"] = W, R
    d["states"] = (int(ops[0]) + 1) if mn == "s_nop" else 1
    return d

def check_seq(lines, name=""):
    ins = [p for p in (parse(l) for l in lines) if p]
    probs = []
    n = len(ins)
    for i, c in enumerate(ins):
        dist = 0
        for k in range(i - 1, max(-1, i - 40), -1):
            p = ins[k]
            need = 0; why = ""
            pv = p["cls"] == "valu"; cv = c["cls"] == "valu"
            vW = {r for r in p["W"] if r[0] in "va"}
            sW = {r for r in p["W"] if r[0] == "s"}
            def upd(nn, w):
                nonlocal need, why
                if nn > need: need, why = nn, w
            if pv and c["cls"] == "mfma" and vW & c["R"]: upd(2, "valu->mfma")
            if pv and p["mn"].startswith(TRANS) and (cv or c["cls"] == "mfma") and vW & c["R"] and not c["mn"].startswith(TRANS): upd(1, "trans->valu")
            if pv and c["mn"].startswith("v_permlane") and vW & c["R"]: upd(2, "valu->permlane")
            if pv and c["mn"].startswith(("v_readfirstlane", "v_readlane")) and vW & c["R"]: upd(1, "valu->readlane")
            if pv and cv and "dpp" in c["line"] and vW & c["R"]: upd(2, "valu->dpp")
            if pv and sW and c["cls"] == "vmem" and sW & c["R"]: upd(5, "valu sgpr->vmem")
            if pv and sW and cv and sW & c["R"]: upd(2, "valu sgpr->valu")
            if pv and sW and c["cls"] == "salu" and sW & c["R"] : upd(1, "valu sgpr->salu (pad)")
            if pv and sW & regs("exec") and c["cls"] == "mfma": upd(4, "valu exec->mfma")
            if p["cls"] == "salu" and sW & regs("m0") and c.get("dma"): upd(1, "m0->dma")
            if p["cls"] == "vmem" and p.get("wide") and p["stdata"] & c["W"]: upd(2 if cv else 1, "store data WAR")
            if p["cls"] == "mfma":
                P = p["passes"]
                D = p["W"]
                if c["cls"] == "mfma":
                    if D & c["C"]:
                        if not (D == c["C"] and P == c["passes"]): upd({4: 6, 8: 10}[P], "mfma D->mfma C overlap")
                    if D & (c["A"] | c["B"] | c["I"]): upd({4: 8, 8: 12}[P], "mfma D->mfma AB")
                    if D & c["W"] and not (D & c["C"]): upd({4: 8, 8: 12}[P], "mfma D->mfma D WAW (conservative)")
                elif c["cls"] in ("valu", "vmem", "ds"):
                    if D & (c["R"] | c["W"]): upd({4: 8, 8: 12}[P], "mfma D->use")
                if cv and p["C"] & c["W"]: upd({4: 3, 8: 7}[P], "mfma C WAR")
            if need > dist:
                probs.append(f"[{name}] {why}: need {need} have {dist}: '{p['line']}' -> '{c['line']}'")
            dist += p["states"]
            if dist > 20: break
    return probs

def walk(lines, decide, start=None, maxn=200000):
    labels = {l.strip()[:-1]: i for i, l in enumerate(lines) if l.strip().endswith(":") and not l.strip().startswith(";")}
    i = labels[start] if start else 0
    out = []
    cnt = {}
    while i < len(lines) and len(out) < maxn:
        l = lines[i]; s = l.split(";")[0].strip()
        i += 1
        if not s or s.endswith(":") or s.startswith("."): continue
        out.append(l)
        mn = s.split()[0]
        if mn == "s_endpgm": break
        if mn == "s_branch":
            i = labels[s.split()[1]]
        elif mn.startswith("s_cbranch"):
            t = s.split()[1]
            cnt[(t, i)] = cnt.get((t, i), 0) + 1
            if decide(t, s, cnt[(t, i)]): i = labels[t]
    return out
```

```python
import sys, math, struct
from asmlib import *

NAME = "concat_heads__ssm_conv_h3__grouped_kv_mqa__prompt"
OPT = dict(diag=False, force_slow=False, prio=True, warm=True)
for a in sys.argv[2:]:
    k, v = a.split("=")
    OPT[k] = int(v) if v.lstrip("-").isdigit() else v

def f2u(x): return struct.unpack("<I", struct.pack("<f", x))[0]

LA, LW, LC, LB, LD, LM = 0, 57344, 65536, 98816, 149248, 158464
LX = 32768
LDS_TOTAL = 158528
PL = 12608
HC = 4160
HCH = 4 * HC
XCH = 4608
M_Q, M_K, M_V, M_P = LM, LM + 4, LM + 8, LM + 12
W_EPOCH, W_FA, W_FB, W_FY = 0, 0x1000, 0x2000, 0x3000
W_KF, W_VF, W_XT, W_YT, W_OF, W_DIAG = 0x10000, 0x30000, 0x60000, 0x220000, 0x400000, 0x800000
WS_SIZE = 0x1000000
S_Q, S_K, S_V, S_SK, S_H, S_X, S_WQ, S_WKV, S_WO, S_OUT, S_WS = 4, 8, 12, 16, 20, 24, 28, 32, 36, 40, 44
S_DP, S_WVP, S_H0, S_H1 = 48, 50, 52, 56
sW, sRB, sJ, sTAG, sR0, sD = 60, 61, 62, 63, 64, 65
sT0, sT1, sT2, sT3, sT4, sT5 = 66, 67, 68, 69, 70, 71
sEX = 94
sN, sOFF, sM0K, sKH = 98, 99, 100, 101
CSCALE = math.log2(math.e) / math.sqrt(28.0)
POLL_MAX = 1 << 18

a = Asm()
nstamp = [0]
SLOT = dict(t_karg=0, m_xland=1, m_b1=2, m_kvst=3, m_wqland=4, m_qdone=5, v_kvland=1, v_xtst=2, v_xtack=3, v_b3=4, v_faok=5, v_xtland=6,
            c_start=7, c_fbok=8, c_mfdone=9, a_start=10, a_end=11, t_ost=12, t_oissue=13, t_omf=14, t_end=15)
stamp_names = SLOT
def stamp(name, group=None):
    if not OPT["diag"]: return
    k = SLOT[name]
    a(f"s_memtime s[96:97]\ns_waitcnt lgkmcnt(0)\ns_mov_b32 s{72+k}, s96")

def srd(base, size):
    a(f"s_mov_b32 s{base+2}, {size}\ns_mov_b32 s{base+3}, 0x20000")

def gemm_emit(reads, mfmas, look, hooks=None, maxout=14):
    hooks = hooks or {}
    ri, done = 0, -1
    for mi, (mt, need) in enumerate(mfmas):
        while ri < len(reads) and reads[ri][1] < mi and (ri - done) <= maxout and (ri <= need + look):
            a(reads[ri][0]); ri += 1
        assert ri > need, (mi, ri, need)
        if need > done:
            a(f"s_waitcnt lgkmcnt({ri - 1 - need})"); done = need
        a(mt)
        if mi in hooks:
            if hooks[mi](): done = ri - 1
    assert ri == len(reads)

def poll(label, load, vflag, exec_lo=None, exec_hi=None, first_issued=False, wait="vmcnt(0)"):
    a(f"s_mov_b32 s{sT5}, 0")
    if first_issued:
        a(f"s_waitcnt {wait}")
        a(f"s_branch {label}_chk")
    a.label(label)
    a(load)
    a("s_waitcnt vmcnt(0)")
    if first_issued: a.label(label + "_chk")
    a(f"v_cmp_ne_u32 vcc, s{sTAG}, v{vflag}")
    a(f"s_add_u32 s{sT5}, s{sT5}, 1")
    a(f"s_cbranch_vccz {label}_ok")
    a(f"s_cmp_gt_u32 s{sT5}, {POLL_MAX}")
    a(f"s_cbranch_scc1 {label}_ok")
    a("s_sleep 2")
    a(f"s_branch {label}")
    a.label(label + "_ok")

a.label(f"{NAME}_kernel")
a("s_cmp_ge_u32 s2, 256\ns_cbranch_scc1 L_end")
a(f"""
s_load_dwordx2 s[{S_X}:{S_X+1}], s[0:1], 48
s_load_dwordx2 s[{S_K}:{S_K+1}], s[0:1], 8
s_load_dwordx2 s[{S_V}:{S_V+1}], s[0:1], 16
s_load_dwordx2 s[{S_SK}:{S_SK+1}], s[0:1], 24
s_load_dwordx2 s[{S_WKV}:{S_WKV+1}], s[0:1], 64
s_load_dwordx2 s[{S_WVP}:{S_WVP+1}], s[0:1], 72
s_load_dwordx2 s[{S_WQ}:{S_WQ+1}], s[0:1], 56
""")
if OPT["diag"]:
    a("s_memrealtime s[92:93]\ns_memtime s[90:91]\ns_mov_b32 s89, 0")
a(f"""
v_lshrrev_b32 v2, 6, v0
v_and_b32 v1, 63, v0
v_readfirstlane_b32 s{sW}, v2
s_and_b32 s{sT0}, s2, 7
s_lshr_b32 s{sT1}, s2, 3
s_and_b32 s{sT2}, s{sT1}, 3
s_lshl_b32 s{sT0}, s{sT0}, 2
s_add_u32 s{sRB}, s{sT0}, s{sT2}
s_lshr_b32 s{sJ}, s{sT1}, 2
s_mul_i32 s{sR0}, s{sRB}, {64*896}
""")
for base, size in ((S_X, 1835008), (S_K, 1835008), (S_V, 1835008), (S_SK, 3584), (S_WKV, 25088), (S_WQ, 401408),
                   (S_Q, 1835008), (S_H, 1835008), (S_WO, 401408), (S_OUT, 3670016), (S_WS, WS_SIZE), (S_H0, 4096), (S_H1, 4096)):
    srd(base, size)
a(f"""
v_mul_u32_u24 v2, 37, v1
v_lshrrev_b32 v2, 8, v2
v_mul_u32_u24 v3, 7, v2
v_sub_u32 v3, v1, v3
s_mul_i32 s{sT3}, s{sJ}, 112
s_cmp_ge_u32 s{sW}, 4
s_cbranch_scc1 L_vpath
""")

def second_batch():
    a(f"""
    s_load_dwordx2 s[{S_WS}:{S_WS+1}], s[0:1], 104
    s_load_dwordx2 s[{S_H}:{S_H+1}], s[0:1], 32
    s_load_dwordx2 s[{S_DP}:{S_DP+1}], s[0:1], 40
    s_load_dwordx2 s[{S_Q}:{S_Q+1}], s[0:1], 0
    s_load_dwordx2 s[{S_WO}:{S_WO+1}], s[0:1], 80
    s_load_dwordx2 s[{S_OUT}:{S_OUT+1}], s[0:1], 88
    """)
def third_batch():
    a(f"""
    s_min_u32 s{sT0}, s2, 223
    s_lshl_b32 s{sT0}, s{sT0}, 2
    s_load_dword s{sTAG}, s[{S_WS}:{S_WS+1}], {W_EPOCH}
    s_load_dword s{sD}, s[{S_DP}:{S_DP+1}], s{sT0}
    """)
def finish_tag():
    a(f"""
    s_mul_i32 s{sTAG}, s{sTAG}, 0x9E3779B1
    s_add_u32 s{sTAG}, s{sTAG}, 0x7F4A7C15
    """)

vX0, vX1, vW, vQ = 16, 17, 18, 19
a(f"""
v_lshrrev_b32 v4, 3, v1
v_lshrrev_b32 v5, 1, v4
v_xor_b32 v5, v5, v1
v_and_b32 v5, 7, v5
s_lshl_b32 s{sT0}, s{sW}, 4
v_add_u32 v4, s{sT0}, v4
v_mul_u32_u24 v4, 896, v4
v_lshl_add_u32 v4, v5, 4, v4
v_add_u32 v{vX0}, s{sR0}, v4
v_xor_b32 v{vX1}, 64, v{vX0}
v_add_u32 v{vX1}, {7168-1024}, v{vX1}
s_and_b32 s{sT0}, s{sJ}, 3
s_lshl_b32 s{sT0}, s{sT0}, 4
s_mul_i32 s{sT1}, s{sW}, 7168
s_add_u32 s{sT0}, s{sT0}, s{sT1}
v_mul_u32_u24 v{vW}, 56, v1
v_add_u32 v{vW}, s{sT0}, v{vW}
v_lshlrev_b32 v4, 2, v2
v_add_u32 v4, s{sW}, v4
v_mul_u32_u24 v4, 896, v4
v_lshl_add_u32 v4, v3, 4, v4
v_add_u32 v{vQ}, s{sT3}, v4
s_lshl_b32 s{sT1}, s{sW}, 11
s_movk_i32 s{sT2}, {3584-1024}
s_waitcnt lgkmcnt(0)
s_cmp_ge_u32 s{sJ}, 4
s_cselect_b32 s{S_WKV}, s{S_WVP}, s{S_WKV}
s_cselect_b32 s{S_WKV+1}, s{S_WVP+1}, s{S_WKV+1}
""")
stamp("t_karg")
for seg in range(7):
    a(f"s_add_u32 m0, s{sT1}, {LA + seg*(8192-128)}")
    a("s_nop 0")
    a(f"buffer_load_dwordx4 v{vX0}, s[{S_X}:{S_X+3}], 0 offen offset:{seg*128} lds")
    a(f"buffer_load_dwordx4 v{vX1}, s[{S_X}:{S_X+3}], 0 offen offset:{seg*128+1024} lds")
a(f"s_add_u32 m0, s{sT1}, {LW}")
a(f"s_mul_i32 s{sT4}, s{sW}, {PL}")
a(f"buffer_load_dwordx4 v{vW}, s[{S_WKV}:{S_WKV+3}], 0 offen lds")
a(f"buffer_load_dwordx4 v{vW}, s[{S_WKV}:{S_WKV+3}], s{sT2} offen offset:1024 lds")
def wslice_dma(srdb, vaddr, sl, n0, n1, nstep=1):
    a("s_mov_b32 exec_hi, 0x00ffffff")
    for n in range(n0, n1):
        a(f"s_add_u32 m0, s{sl}, {LB + 896*n}")
        a(f"s_mov_b32 s{sT0}, {28672*n}")
        a(f"buffer_load_dwordx4 v{vaddr}, s[{srdb}:{srdb+3}], s{sT0} offen lds")
    a("s_mov_b32 exec_hi, -1")
wslice_dma(S_WQ, vQ, sT4, 0, 14)
second_batch()
vA0, vA1, vWt = 20, 21, 22
a(f"""
v_and_b32 v4, 15, v1
v_lshrrev_b32 v5, 4, v1
v_lshrrev_b32 v6, 1, v4
v_xor_b32 v6, v6, v5
s_lshl_b32 s{sT0}, s{sW}, 4
v_add_u32 v7, s{sT0}, v4
v_lshlrev_b32 v7, 7, v7
v_lshl_add_u32 v{vA0}, v6, 4, v7
v_xor_b32 v{vA1}, 64, v{vA0}
v_bfe_u32 v6, v1, 2, 2
v_lshl_add_u32 v6, v5, 3, v6
v_lshlrev_b32 v6, 4, v6
v_and_b32 v7, 1, v1
v_lshl_add_u32 v6, v7, 3, v6
v_add_u32 v{vWt}, {LW}, v6
s_waitcnt lgkmcnt(0)
""")
third_batch()
a(f"""
v_mov_b32 v6, 0
v_mov_b32 v7, {LM}
ds_write_b32 v7, v6
ds_write_b32 v7, v6 offset:4
ds_write_b32 v7, v6 offset:8
ds_write_b32 v7, v6 offset:12
s_waitcnt lgkmcnt(0)
""")
finish_tag()
a("s_waitcnt vmcnt(14)")
stamp("m_xland")
a("s_barrier")
stamp("m_b1")
ACC = 24
def kv_gemm(isK):
    reads, mf = [], []
    NB = 6
    for ks in range(14):
        base = 32 + 8 * (ks % NB)
        war = ks - NB
        va = vA0 if ks % 2 == 0 else vA1
        reads.append((f"ds_read_b128 v[{base}:{base+3}], v{va} offset:{(ks//2)*8192}", war))
        reads.append((f"ds_read_b64_tr_b16 v[{base+4}:{base+5}], v{vWt} offset:{ks*512}", war))
        reads.append((f"ds_read_b64_tr_b16 v[{base+6}:{base+7}], v{vWt} offset:{ks*512+64}", war))
        x, w = f"v[{base}:{base+3}]", f"v[{base+4}:{base+7}]"
        c = "0" if ks == 0 else f"v[{ACC}:{ACC+3}]"
        A, B = (w, x) if isK else (x, w)
        mf.append((f"v_mfma_f32_16x16x32_bf16 v[{ACC}:{ACC+3}], {A}, {B}, {c}", 3*ks+2))
    gemm_emit(reads, mf, look=12)
a(f"s_cmp_ge_u32 s{sJ}, 4\ns_cbranch_scc1 L_vgemm")
kv_gemm(True)
a(f"""
s_lshl_b32 s{sT0}, s{sRB}, 12
s_lshr_b32 s{sT1}, s{sW}, 1
s_lshl_b32 s{sT1}, s{sT1}, 11
s_add_u32 s{sT0}, s{sT0}, s{sT1}
s_lshl_b32 s{sT1}, s{sJ}, 9
s_add_u32 s{sT0}, s{sT0}, s{sT1}
s_and_b32 s{sT1}, s{sW}, 1
s_lshl_b32 s{sT1}, s{sT1}, 8
s_add_u32 s{sT0}, s{sT0}, s{sT1}
s_add_u32 s{sT0}, s{sT0}, {W_KF}
v_lshlrev_b32 v4, 4, v1
v_add_u32 v4, s{sT0}, v4
s_mov_b32 s{sT1}, 0x0000ffff
s_mov_b32 s{sT2}, 0
s_cmp_eq_u32 s{sJ}, 3
s_cbranch_scc0 L_kvstore
s_mov_b32 exec_lo, 0xffff0000
s_mov_b32 exec_hi, 0xffff0000
v_mov_b32 v{ACC}, 0
v_mov_b32 v{ACC+1}, 0
v_mov_b32 v{ACC+2}, 0
v_mov_b32 v{ACC+3}, 0
s_mov_b64 exec, -1
s_branch L_kvstore
""")
a.label("L_vgemm")
kv_gemm(False)
a(f"""
s_lshl_b32 s{sT0}, s{sRB}, 12
s_lshl_b32 s{sT1}, s{sW}, 10
s_add_u32 s{sT0}, s{sT0}, s{sT1}
s_and_b32 s{sT1}, s{sJ}, 3
s_lshl_b32 s{sT1}, s{sT1}, 7
s_add_u32 s{sT0}, s{sT0}, s{sT1}
s_add_u32 s{sT0}, s{sT0}, {W_VF}
v_lshlrev_b32 v4, 4, v1
v_add_u32 v4, s{sT0}, v4
s_mov_b32 s{sT1}, 0x000000ff
s_mov_b32 s{sT2}, 0x000000ff
s_cmp_eq_u32 s{sJ}, 7
s_cbranch_scc0 L_kvstore
s_mov_b32 exec_lo, 0xf0f0f0f0
s_mov_b32 exec_hi, 0xf0f0f0f0
v_mov_b32 v{ACC}, 0
v_mov_b32 v{ACC+1}, 0
v_mov_b32 v{ACC+2}, 0
v_mov_b32 v{ACC+3}, 0
s_mov_b64 exec, -1
""")
a.label("L_kvstore")
a(f"""
v_mul_f32 v5, v{ACC}, v{ACC}
v_fmac_f32 v5, v{ACC+1}, v{ACC+1}
v_fmac_f32 v5, v{ACC+2}, v{ACC+2}
v_fmac_f32 v5, v{ACC+3}, v{ACC+3}
v_mov_b32 v6, {M_P}
s_cmp_eq_u32 s{sJ}, 7
s_cbranch_scc0 L_kvst2
s_mov_b32 exec_lo, 0x10101010
s_mov_b32 exec_hi, 0x10101010
v_mov_b32 v{ACC}, 1.0
v_mov_b32 v{ACC+1}, 1.0
v_mov_b32 v{ACC+2}, 1.0
v_mov_b32 v{ACC+3}, 1.0
s_mov_b64 exec, -1
""")
a.label("L_kvst2")
a(f"""
v_cvt_pk_bf16_f32 v28, v{ACC}, v{ACC+1}
v_cvt_pk_bf16_f32 v29, v{ACC+2}, v{ACC+3}
v_mov_b32 v30, 0
v_mov_b32 v31, 0
ds_max_u32 v6, v5
s_nop 0
v_permlane16_swap_b32 v28, v30
v_permlane16_swap_b32 v29, v31
s_mov_b32 exec_lo, s{sT1}
s_mov_b32 exec_hi, s{sT2}
buffer_store_dwordx4 v[28:31], v4, s[{S_WS}:{S_WS+3}], 0 offen sc1
s_mov_b64 exec, -1
""")
stamp("m_kvst")
vB = [16, 17, 18, 19]; vWq = 23
a(f"""
v_and_b32 v4, 31, v1
v_lshrrev_b32 v5, 5, v1
v_bfe_u32 v6, v4, 1, 3
v_xor_b32 v6, v6, v5
s_lshr_b32 s{sT0}, s{sW}, 1
s_lshl_b32 s{sT0}, s{sT0}, 5
v_add_u32 v7, s{sT0}, v4
v_lshlrev_b32 v7, 7, v7
v_lshl_add_u32 v{vB[0]}, v6, 4, v7
v_xor_b32 v{vB[1]}, 32, v{vB[0]}
v_xor_b32 v{vB[2]}, 64, v{vB[0]}
v_xor_b32 v{vB[3]}, 96, v{vB[0]}
v_and_b32 v4, 1, v1
v_bfe_u32 v6, v1, 1, 1
v_lshl_add_u32 v4, v4, 1, v6
v_bfe_u32 v6, v1, 4, 1
v_lshl_add_u32 v4, v6, 2, v4
v_min_u32 v4, 6, v4
v_lshlrev_b32 v4, 3, v4
v_mul_u32_u24 v5, 224, v5
v_add_u32 v4, v4, v5
v_bfe_u32 v6, v1, 2, 2
v_mul_u32_u24 v6, {PL}, v6
v_add_u32 v4, v4, v6
s_and_b32 s{sT0}, s{sW}, 1
s_mul_i32 s{sT0}, s{sT0}, 56
s_add_u32 s{sT0}, s{sT0}, {LB}
v_add_u32 v{vWq}, s{sT0}, v4
s_waitcnt vmcnt(1) lgkmcnt(0)
""")
stamp("m_wqland")
a("s_barrier")
QA = 32
def q_gemm():
    reads, mf = [], []
    NB = 6
    for ks in range(28):
        base = 48 + 8 * (ks % NB)
        war = ks - NB
        reads.append((f"ds_read_b64_tr_b16 v[{base}:{base+1}], v{vWq} offset:{ks*448}", war))
        reads.append((f"ds_read_b64_tr_b16 v[{base+2}:{base+3}], v{vWq} offset:{ks*448+112}", war))
        reads.append((f"ds_read_b128 v[{base+4}:{base+7}], v{vB[ks%4]} offset:{(ks//4)*8192}", war))
        c = "0" if ks == 0 else f"v[{QA}:{QA+15}]"
        mf.append((f"v_mfma_f32_32x32x16_bf16 v[{QA}:{QA+15}], v[{base}:{base+3}], v[{base+4}:{base+7}], {c}", 3*ks+2))
    def hook():
        a("s_waitcnt vmcnt(0)")
        a("s_barrier")
        return False
    gemm_emit(reads, mf, look=12, hooks={OPT.get("b3at", 15): hook})
q_gemm()
QF = 8
a(f"""
v_mov_b32 v4, {hex(f2u(CSCALE))}
v_cmp_gt_u32 vcc, 32, v1
s_lshl_b32 s{sT0}, s{sW}, 11
s_add_u32 s{sT0}, s{sT0}, {LW}
v_cndmask_b32 v5, 0, v4, vcc
v_lshlrev_b32 v6, 4, v1
v_add_u32 v6, s{sT0}, v6
v_mov_b32 v7, {M_Q}
s_nop 3
""")
for r in range(16):
    a(f"v_mul_f32 v{QA+r}, v{4 if r < 12 else 5}, v{QA+r}")
a(f"v_mul_f32 v2, v{QA}, v{QA}")
for r in range(1, 16):
    a(f"v_fmac_f32 v2, v{QA+r}, v{QA+r}")
for r in range(8):
    a(f"v_cvt_pk_bf16_f32 v{QF+r}, v{QA+2*r}, v{QA+2*r+1}")
a(f"""
ds_max_u32 v7, v2
ds_write_b128 v6, v[{QF}:{QF+3}]
ds_write_b128 v6, v[{QF+4}:{QF+7}] offset:1024
s_waitcnt lgkmcnt(0)
""")
stamp("m_qdone")
a("s_barrier")
a("s_branch L_conv")

a.label("L_vpath")
vKh, vK, vSK = 16, 17, 18
a(f"""
s_sub_u32 s{sT4}, s{sW}, 4
s_mul_i32 s{sT0}, s{sT4}, 7
v_add_u32 v4, s{sT0}, v3
v_mul_u32_u24 v5, {8*896}, v2
v_lshl_add_u32 v5, v4, 2, v5
s_add_u32 s{sT1}, s{sR0}, s{sT3}
v_add_u32 v{vK}, s{sT1}, v5
v_subrev_u32 v{vKh}, 2688, v{vK}
s_mul_i32 s{sT1}, s{sJ}, 448
v_lshlrev_b32 v4, 4, v4
v_add_u32 v{vSK}, s{sT1}, v4
s_movk_i32 s{sT2}, 4480
s_waitcnt lgkmcnt(0)
""")
stamp("t_karg")
a("s_mov_b32 exec_hi, 0x00ffffff")
a(f"buffer_load_dwordx4 v[52:55], v{vSK}, s[{S_SK}:{S_SK+3}], 0 offen")
for i in range(3):
    a(f"buffer_load_dword v{32+i}, v{vKh}, s[{S_K}:{S_K+3}], 0 offen offset:{896*i}")
for i in range(8):
    so, im = ("0", 896*i) if i < 5 else (f"s{sT2}", 896*(i-5))
    a(f"buffer_load_dword v{35+i}, v{vK}, s[{S_K}:{S_K+3}], {so} offen offset:{im}")
for i in range(8):
    so, im = ("0", 896*i) if i < 5 else (f"s{sT2}", 896*(i-5))
    a(f"buffer_load_dword v{44+i}, v{vK}, s[{S_V}:{S_V+3}], {so} offen offset:{im}")
a("s_mov_b32 exec_hi, -1")
second_batch()
NWARM = 0
if OPT["warm"]:
    a(f"""
    s_getpc_b64 s[{sT0}:{sT0+1}]
    """)
    a.label("L_pc")
    a(f"""
    s_sub_u32 s{sT0}, s{sT0}, L_pc-{NAME}_kernel
    s_subb_u32 s{sT0+1}, s{sT0+1}, 0
    v_and_b32 v4, 255, v0
    v_lshlrev_b32 v4, 7, v4
    v_min_u32 v4, L_end-{NAME}_kernel, v4
    global_load_dword v250, v4, s[{sT0}:{sT0+1}]
    """)
    NWARM = 1
vH, vH1, vHX, vHX1 = 19, 20, 21, 22
a(f"""
s_lshl_b32 s{sT0}, s{sT4}, 10
v_lshlrev_b32 v4, 4, v1
v_add_u32 v4, s{sT0}, v4
v_subrev_u32 v{vH}, 32, v4
v_subrev_u32 v{vH1}, 16, v4
s_min_u32 s{sT1}, s2, 223
s_lshl_b32 s{sT1}, s{sT1}, 13
v_bfe_u32 v5, v1, 1, 1
v_lshlrev_b32 v5, 12, v5
v_and_b32 v6, 1, v1
v_lshl_add_u32 v5, v6, 4, v5
v_add_u32 v5, {4096-32}, v5
v_add_u32 v{vHX}, s{sT1}, v5
s_waitcnt lgkmcnt(0)
s_add_u32 s{S_H0}, s{S_H}, s{sT1}
s_addc_u32 s{S_H0+1}, s{S_H+1}, 0
s_add_u32 s{S_H1}, s{S_H0}, 4096
s_addc_u32 s{S_H1+1}, s{S_H0+1}, 0
buffer_load_dwordx4 v[140:143], v{vH}, s[{S_H0}:{S_H0+3}], 0 offen
buffer_load_dwordx2 v[144:145], v{vH1}, s[{S_H0}:{S_H0+3}], 0 offen
buffer_load_dwordx4 v[148:151], v{vH}, s[{S_H1}:{S_H1+3}], 0 offen
buffer_load_dwordx2 v[152:153], v{vH1}, s[{S_H1}:{S_H1+3}], 0 offen
buffer_load_dwordx4 v[156:159], v{vHX}, s[{S_H}:{S_H+3}], 0 offen
buffer_load_dwordx2 v[160:161], v{vHX}, s[{S_H}:{S_H+3}], 0 offen offset:16
""")
third_batch()
vE, vEr, vXT = 23, 24, 25
a(f"""
s_lshl_b32 s{sT0}, s{sT4}, 10
s_add_u32 s{sT0}, s{sT0}, {LC}
v_mul_u32_u24 v4, 144, v3
v_lshl_add_u32 v4, v2, 4, v4
v_add_u32 v{vE}, s{sT0}, v4
v_lshrrev_b32 v5, 3, v1
v_and_b32 v6, 7, v1
v_mul_u32_u24 v4, 144, v5
v_lshl_add_u32 v4, v6, 4, v4
v_add_u32 v{vEr}, s{sT0}, v4
s_mul_i32 s{sT0}, s{sJ}, 56
s_mul_i32 s{sT1}, s{sT4}, 14
s_add_u32 s{sT0}, s{sT0}, s{sT1}
s_lshl_b32 s{sT0}, s{sT0}, 12
s_lshl_b32 s{sT1}, s{sRB}, 7
s_add_u32 s{sT0}, s{sT0}, s{sT1}
s_add_u32 s{sT0}, s{sT0}, {W_XT}
v_lshlrev_b32 v5, 13, v5
v_lshl_add_u32 v5, v6, 4, v5
v_add_u32 v{vXT}, s{sT0}, v5
s_movk_i32 s{sT2}, 4096
s_waitcnt vmcnt({6+NWARM}) lgkmcnt(0)
""")
stamp("v_kvland")
finish_tag()
HI = "0xffff0000"
a(f"""
v_lshlrev_b32 v102, 16, v52
v_lshlrev_b32 v103, 16, v54
v_and_b32 v104, {HI}, v52
v_and_b32 v105, {HI}, v54
v_lshlrev_b32 v106, 16, v53
v_lshlrev_b32 v107, 16, v55
v_and_b32 v108, {HI}, v53
v_and_b32 v109, {HI}, v55
""")
for n in range(11):
    a(f"v_lshlrev_b32 v{64+2*n}, 16, v{32+n}\nv_and_b32 v{65+2*n}, {HI}, v{32+n}")
for n in range(8):
    a(f"v_lshlrev_b32 v{86+2*n}, 16, v{44+n}\nv_and_b32 v{87+2*n}, {HI}, v{44+n}")
P = lambda r: f"v[{r}:{r+1}]"
for t in range(8):
    a(f"v_pk_mul_f32 {P(110+2*t)}, {P(64+2*t)}, {P(108)}")
for jj in (2, 1, 0):
    for t in range(8):
        a(f"v_pk_fma_f32 {P(110+2*t)}, {P(64+2*(t+3-jj))}, {P(102+2*jj)}, {P(110+2*t)}")
for t in range(8):
    a(f"v_pk_mul_f32 {P(110+2*t)}, {P(110+2*t)}, {P(86+2*t)}")
for c in range(2):
    for e in range(4):
        a(f"v_cvt_pk_bf16_f32 v{126+4*c+e}, v{110+2*(7-2*e)+c}, v{110+2*(6-2*e)+c}")
a(f"""
s_mov_b32 exec_hi, 0x00ffffff
ds_write_b128 v{vE}, v[126:129]
ds_write_b128 v{vE}, v[130:133] offset:{HC}
s_waitcnt lgkmcnt(0)
ds_read_b128 v[134:137], v{vEr}
ds_read_b128 v[164:167], v{vEr} offset:{HC}
s_waitcnt lgkmcnt(1)
buffer_store_dwordx4 v[134:137], v{vXT}, s[{S_WS}:{S_WS+3}], 0 offen sc1
s_waitcnt lgkmcnt(0)
buffer_store_dwordx4 v[164:167], v{vXT}, s[{S_WS}:{S_WS+3}], s{sT2} offen sc1
s_mov_b32 exec_hi, -1
""")
stamp("v_xtst")
a("s_barrier")
vHC, vHCX = 26, 27
a(f"""
s_lshl_b32 s{sT0}, s{sT4}, 10
s_add_u32 s{sT0}, s{sT0}, {LC}
v_lshlrev_b32 v4, 4, v1
v_add_u32 v{vHC}, s{sT0}, v4
v_bfe_u32 v5, v1, 1, 1
v_mul_u32_u24 v5, {HCH}, v5
v_and_b32 v6, 1, v1
v_lshl_add_u32 v5, v6, 4, v5
v_add_u32 v{vHCX}, {LC + 4096}, v5
s_waitcnt vmcnt(2)
""")
def hcopy(d, t, vaddr, off):
    for i in range(4): a(f"v_alignbit_b32 v{t+i}, v{d+i+1}, v{d+i}, 16")
    for i in range(4): a(f"v_mov_b32 v{t+4+i}, v{d+i+1}")
    for i in range(4): a(f"v_alignbit_b32 v{t+8+i}, v{d+i+2}, v{d+i+1}, 16")
    a(f"ds_write_b128 v{vaddr}, v[{d}:{d+3}] offset:{off}")
    a(f"ds_write_b128 v{vaddr}, v[{t}:{t+3}] offset:{off+HC}")
    a(f"ds_write_b128 v{vaddr}, v[{t+4}:{t+7}] offset:{off+2*HC}")
    a(f"ds_write_b128 v{vaddr}, v[{t+8}:{t+11}] offset:{off+3*HC}")
hcopy(140, 64, vHC, 0)
hcopy(148, 76, vHC, HCH)
a("s_mov_b64 exec, 15")
hcopy(156, 88, vHCX, 0)
a("s_mov_b64 exec, -1")
a(f"""
v_lshrrev_b32 v4, 5, v1
v_mul_u32_u24 v4, {XCH}, v4
v_and_b32 v5, 31, v1
v_lshl_add_u32 v4, v5, 4, v4
v_add_u32 v4, {LD}, v4
v_mov_b32 v100, 0
v_mov_b32 v101, 0
v_mov_b32 v102, 0
v_mov_b32 v103, 0
ds_write_b128 v4, v[100:103]
s_lshl_b32 s{sT0}, s{sJ}, 5
s_add_u32 s{sT0}, s{sT0}, s{sRB}
s_lshl_b32 s{sT0}, s{sT0}, 4
s_add_u32 s{sT0}, s{sT0}, {W_FA}
v_mov_b32 v28, s{sT0}
s_lshl_b32 s{sT0}, s{sRB}, 3
s_add_u32 s{sT0}, s{sT0}, s{sJ}
s_lshl_b32 s{sT0}, s{sT0}, 4
s_add_u32 s{sT0}, s{sT0}, {W_FB}
v_mov_b32 v29, s{sT0}
v_mov_b32 v30, s{sTAG}
v_mov_b32 v7, {M_P}
s_waitcnt vmcnt(0) lgkmcnt(0)
""")
stamp("v_xtack")
a("s_barrier")
a(f"""
s_cmp_eq_u32 s{sW}, 4
s_cbranch_scc0 L_nofa
s_mov_b64 exec, 1
buffer_store_dword v30, v28, s[{S_WS}:{S_WS+3}], 0 offen sc1
s_mov_b64 exec, -1
""")
a.label("L_nofa")
a(f"""
ds_read_b32 v31, v7
s_min_u32 s{sT1}, s2, 223
s_mul_i32 s{sT0}, s{sT1}, 2341
s_lshr_b32 s{sT0}, s{sT0}, 16
s_lshl_b32 s{sT0}, s{sT0}, 9
s_add_u32 s{sT0}, s{sT0}, {W_FA}
v_and_b32 v4, 31, v1
v_lshlrev_b32 v4, 4, v4
v_add_u32 v32, s{sT0}, v4
s_lshl_b32 s{sT1}, s{sT1}, 13
s_lshl_b32 s{sT0}, s{sT4}, 11
s_add_u32 s{sT1}, s{sT1}, s{sT0}
s_add_u32 s{sT1}, s{sT1}, {W_XT}
v_lshlrev_b32 v4, 4, v1
v_add_u32 v33, s{sT1}, v4
s_waitcnt lgkmcnt(0)
s_barrier
""")
stamp("v_b3")
a(f"""
s_cmp_eq_u32 s{sW}, 5
s_cbranch_scc0 L_nofb
s_mov_b64 exec, 1
buffer_store_dwordx2 v[30:31], v29, s[{S_WS}:{S_WS+3}], 0 offen sc1
s_mov_b64 exec, -1
""")
a.label("L_nofb")
a("s_cmp_ge_u32 s2, 224\ns_cbranch_scc1 L_noxt")
if OPT.get("fasleep", 0):
    a(f"s_sleep {OPT['fasleep']}")
poll("L_pfa", f"buffer_load_dword v34, v32, s[{S_WS}:{S_WS+3}], 0 offen sc1", 34)
stamp("v_faok")
a(f"""
s_lshr_b32 s{sT0}, s{sT4}, 1
s_mul_i32 s{sT0}, s{sT0}, {XCH}
s_and_b32 s{sT1}, s{sT4}, 1
s_lshl_b32 s{sT1}, s{sT1}, 11
s_add_u32 s{sT0}, s{sT0}, s{sT1}
s_add_u32 m0, s{sT0}, {LD + 512}
s_nop 0
buffer_load_dwordx4 v33, s[{S_WS}:{S_WS+3}], 0 offen sc1 lds
buffer_load_dwordx4 v33, s[{S_WS}:{S_WS+3}], 0 offen offset:1024 sc1 lds
""")
a.label("L_noxt")
a(f"""
s_lshl_b32 s{sT0}, s{sT4}, 11
s_add_u32 s{sT0}, s{sT0}, {LW}
v_lshlrev_b32 v6, 4, v1
v_add_u32 v6, s{sT0}, v6
s_waitcnt vmcnt(0)
""")
stamp("v_xtland")
a(f"""
s_barrier
ds_read_b128 v[{QF}:{QF+3}], v6
ds_read_b128 v[{QF+4}:{QF+7}], v6 offset:1024
s_waitcnt lgkmcnt(0)
""")

a.label("L_conv")
stamp("c_start")
vF, vG, vFB, vFBa = 160, 161, 162, 164
KF = 240
a(f"""
s_lshl_b32 s{sT0}, s{sW}, 9
s_add_u32 s{sT0}, s{sT0}, {W_FB}
v_and_b32 v4, 31, v1
v_lshlrev_b32 v4, 4, v4
v_add_u32 v{vFBa}, s{sT0}, v4
buffer_load_dwordx2 v[{vFB}:{vFB+1}], v{vFBa}, s[{S_WS}:{S_WS+3}], 0 offen sc1
v_mul_u32_u24 v2, 37, v1
v_lshrrev_b32 v2, 8, v2
v_mul_u32_u24 v3, 7, v2
v_sub_u32 v3, v1, v3
s_and_b32 s{sT1}, s{sW}, 3
s_lshr_b32 s{sKH}, s{sW}, 2
v_lshlrev_b32 v4, 2, v2
v_add_u32 v4, s{sT1}, v4
v_mul_u32_u24 v4, 896, v4
v_lshl_add_u32 v4, v3, 4, v4
s_mul_i32 s{sT3}, s{sJ}, 112
s_mul_i32 s{sT2}, s{sKH}, {7*28672}
s_add_u32 s{sT3}, s{sT3}, s{sT2}
v_add_u32 v5, s{sT3}, v4
s_mul_i32 s{sT4}, s{sT1}, {PL}
s_mul_i32 s{sT2}, s{sKH}, {7*896}
s_add_u32 s{sT4}, s{sT4}, s{sT2}
""")
wslice_dma(S_WO, 5, sT4, 0, 7)
vRing, vDK, vDV = 96, 97, 99
a(f"""
s_lshl_b32 s{sT0}, s{sKH}, 14
v_lshlrev_b32 v4, 4, v1
v_add_u32 v169, s{sT0}, v4
s_and_b32 s{sT1}, s{sW}, 3
s_lshl_b32 s{sT1}, s{sT1}, 11
s_add_u32 s{sM0K}, s{sT0}, s{sT1}
s_lshl_b32 s{sT0}, s{sKH}, 16
s_add_u32 s{sT2}, s{sT0}, {W_KF}
v_add_u32 v166, s{sT2}, v4
s_add_u32 s{sT0}, s{sT0}, s{sT1}
s_add_u32 s{sT2}, s{sT0}, {W_KF + 2048}
v_add_u32 v167, s{sT2}, v4
s_add_u32 s{sT2}, s{sT0}, {W_VF}
v_add_u32 v168, s{sT2}, v4
""")
def ring_dma(vk, vv, soff):
    a(f"""
    s_mov_b32 m0, s{sM0K}
    s_nop 0
    buffer_load_dwordx4 v{vk}, s[{S_WS}:{S_WS+3}], {soff} offen sc1 lds
    buffer_load_dwordx4 v{vk}, s[{S_WS}:{S_WS+3}], {soff} offen offset:1024 sc1 lds
    s_add_u32 m0, s{sM0K}, 8192
    s_xor_b32 s{sM0K}, s{sM0K}, 0x10000
    buffer_load_dwordx4 v{vv}, s[{S_WS}:{S_WS+3}], {soff} offen sc1 lds
    buffer_load_dwordx4 v{vv}, s[{S_WS}:{S_WS+3}], {soff} offen offset:1024 sc1 lds
    """)
uid = [0]
def mid_hook(drain=True):
    uid[0] += 1
    L = f"L_pfb{uid[0]}"
    poll(L, f"buffer_load_dwordx2 v[{vFB}:{vFB+1}], v{vFBa}, s[{S_WS}:{S_WS+3}], 0 offen sc1", vFB, first_issued=True, wait="vmcnt(7)")
    a(f"""
    v_and_b32 v4, 4, v1
    v_add_u32 v4, {M_K}, v4
    ds_max_u32 v4, v{vFB+1}
    s_waitcnt lgkmcnt(0)
    """)
    stamp("c_fbok")
    a("s_barrier")
    a(f"""
    buffer_load_dwordx4 v[{KF}:{KF+3}], v166, s[{S_WS}:{S_WS+3}], 0 offen sc1
    buffer_load_dwordx4 v[{KF+4}:{KF+7}], v166, s[{S_WS}:{S_WS+3}], 0 offen offset:1024 sc1
    """)
    ring_dma(167, 168, "0")
    a(f"""
    s_or_b32 s{sT0}, s2, s{sW}
    s_cmp_eq_u32 s{sT0}, 0
    s_cbranch_scc0 {L}_ne
    v_mov_b32 v4, {W_EPOCH}
    v_mov_b32 v5, s{sTAG}
    s_mov_b64 exec, 1
    buffer_store_dword v5, v4, s[{S_WS}:{S_WS+3}], 0 offen sc1
    s_mov_b64 exec, -1
    """)
    a.label(L + "_ne")
    return True
a("s_cmp_ge_u32 s2, 224\ns_cbranch_scc1 L_noconv")
a(f"""
v_and_b32 v4, 15, v1
v_lshrrev_b32 v5, 4, v1
v_add_u32 v6, 1, v4
v_and_b32 v6, 3, v6
v_add_u32 v7, 25, v4
v_sub_u32 v7, v7, v6
v_lshlrev_b32 v2, 3, v5
v_sub_u32 v7, v7, v2
v_lshlrev_b32 v7, 1, v7
v_mul_u32_u24 v6, {HC}, v6
v_add_u32 v7, v7, v6
s_bfe_u32 s{sT1}, s{sW}, 0x10001
s_lshl_b32 s{sT1}, s{sT1}, 8
s_mul_i32 s{sT0}, s{sKH}, {HCH}
s_add_u32 s{sT0}, s{sT0}, s{sT1}
s_add_u32 s{sT0}, s{sT0}, {LC}
v_add_u32 v{vF}, s{sT0}, v7
v_lshlrev_b32 v4, 5, v4
v_lshl_add_u32 v4, v5, 4, v4
s_mul_i32 s{sT0}, s{sKH}, {XCH}
s_sub_u32 s{sT0}, s{sT0}, s{sT1}
s_add_u32 s{sT0}, s{sT0}, {LD + 480 - 192}
v_add_u32 v{vG}, s{sT0}, v4
s_bitcmp1_b32 s{sW}, 0
s_cbranch_scc1 L_convB
""")
CA = 16
def conv(tiles):
    mx = max(tiles)
    reads, mf = [], []
    lastuse = {}
    first = {t: True for t in tiles}
    mid = None
    for r in range(4):
        Fb = 32 + 32 * (r % 2); Gb = 96 + 32 * (r % 2)
        idxF, idxG = {}, {}
        for L in range(mx + 1):
            wf = lastuse.get(("F", r % 2, L), -1); wg = lastuse.get(("G", r % 2, L), -1)
            reads.append((f"ds_read_b64 v[{Fb+4*L}:{Fb+4*L+1}], v{vF} offset:{512*L + 64*r}", wf))
            reads.append((f"ds_read_b64 v[{Fb+4*L+2}:{Fb+4*L+3}], v{vF} offset:{512*L + 64*r + 8}", wf))
            idxF[L] = len(reads) - 1
            reads.append((f"ds_read_b128 v[{Gb+4*L}:{Gb+4*L+3}], v{vG} offset:{512*L + 192 - 64*r}", wg))
            idxG[L] = len(reads) - 1
        pairs = [(i, t - i, t) for t in tiles for i in range(t + 1)]
        pairs.sort(key=lambda p: (max(idxF[p[0]], idxG[p[1]]), p[2]))
        for (i, d, t) in pairs:
            ac = CA + 4 * tiles.index(t)
            c = "0" if first[t] else f"v[{ac}:{ac+3}]"
            first[t] = False
            mf.append((f"v_mfma_f32_16x16x32_bf16 v[{ac}:{ac+3}], v[{Fb+4*i}:{Fb+4*i+3}], v[{Gb+4*d}:{Gb+4*d+3}], {c}", max(idxF[i], idxG[d])))
            lastuse[("F", r % 2, i)] = len(mf) - 1
            lastuse[("G", r % 2, d)] = len(mf) - 1
        if r == OPT.get("midr", 1): mid = len(mf) - 1
    gemm_emit(reads, mf, look=14, hooks={mid: mid_hook})
TA, TB = [0, 3, 4, 7], [1, 2, 5, 6]
conv(TA)
a(f"s_mov_b32 s{sT0}, {TA[0]*512 | (TA[2]*512) << 16}\ns_mov_b32 s{sT1}, {TA[1]*512 | (TA[3]*512) << 16}\ns_branch L_convred")
a.label("L_convB")
conv(TB)
a(f"s_mov_b32 s{sT0}, {TB[0]*512 | (TB[2]*512) << 16}\ns_mov_b32 s{sT1}, {TB[1]*512 | (TB[3]*512) << 16}")
a.label("L_convred")
a(f"""
s_bfe_u32 s{sT2}, s{sW}, 0x10001
s_lshl_b32 s{sT3}, s{sT2}, 4
s_lshr_b32 s{sT0}, s{sT0}, s{sT3}
s_and_b32 s{sT0}, s{sT0}, 0xffff
s_lshr_b32 s{sT1}, s{sT1}, s{sT3}
s_and_b32 s{sT1}, s{sT1}, 0xffff
s_lshl_b32 s{sT3}, s{sW}, 11
s_add_u32 s{sT3}, s{sT3}, {LX}
v_lshlrev_b32 v4, 4, v1
v_add_u32 v5, s{sT3}, v4
v_xor_b32 v6, 4096, v5
s_cmp_eq_u32 s{sT2}, 0
s_cbranch_scc1 L_cr0
ds_write_b128 v5, v[{CA}:{CA+3}]
ds_write_b128 v5, v[{CA+4}:{CA+7}] offset:1024
""")
for r in range(8): a(f"v_mov_b32 v{CA+r}, v{CA+8+r}")
a("s_branch L_cr1")
a.label("L_cr0")
a(f"""
ds_write_b128 v5, v[{CA+8}:{CA+11}]
ds_write_b128 v5, v[{CA+12}:{CA+15}] offset:1024
""")
a.label("L_cr1")
a(f"""
v_and_b32 v2, 15, v1
v_lshlrev_b32 v2, 5, v2
v_bfe_u32 v3, v1, 5, 1
v_lshl_add_u32 v2, v3, 4, v2
v_bfe_u32 v3, v1, 4, 1
v_lshlrev_b32 v7, 3, v3
v_sub_u32 v34, v2, v7
s_mul_i32 s{sT2}, s{sKH}, {XCH}
s_add_u32 s{sT2}, s{sT2}, {LD + 512 + 8}
v_add_u32 v34, s{sT2}, v34
v_add_u32 v35, s{sT1}, v34
v_add_u32 v34, s{sT0}, v34
ds_read_b64 v[36:37], v34
ds_read_b64 v[38:39], v35
v_add_u32 v2, v2, v7
s_lshl_b32 s{sT2}, s{sD}, 16
s_and_b32 s{sT3}, s{sD}, 0xffff0000
s_cmp_eq_u32 s{sKH}, 0
s_cselect_b32 s{sT2}, s{sT2}, s{sT3}
s_waitcnt vmcnt(0) lgkmcnt(0)
""")
stamp("c_mfdone")
a("s_barrier")
a(f"""
ds_read_b128 v[40:43], v6
ds_read_b128 v[44:47], v6 offset:1024
""")
for T in range(2):
    b = 36 + 2 * T; o = 48 + 4 * T
    a(f"""
    v_and_b32 v{o}, {HI}, v{b+1}
    v_lshlrev_b32 v{o+1}, 16, v{b+1}
    v_and_b32 v{o+2}, {HI}, v{b}
    v_lshlrev_b32 v{o+3}, 16, v{b}
    """)
for r in range(8): a(f"v_fmac_f32 v{CA+r}, s{sT2}, v{48+r}")
a(f"""
s_lshl_b32 s{sT3}, s{sW}, 10
s_add_u32 s{sT3}, s{sT3}, {LX + 16384}
v_add_u32 v2, s{sT3}, v2
v_add_u32 v3, s{sT3}, v4
s_lshl_b32 s{sT2}, s2, 13
s_lshl_b32 s{sT3}, s{sKH}, 12
s_add_u32 s{sT2}, s{sT2}, s{sT3}
s_add_u32 s{sT2}, s{sT2}, {W_YT}
v_mov_b32 v5, s{sT0}
v_mov_b32 v7, s{sT1}
v_cmp_gt_u32 vcc, 32, v1
v_and_b32 v34, 31, v1
v_lshlrev_b32 v34, 4, v34
v_cndmask_b32 v5, v7, v5, vcc
v_add3_u32 v5, v5, v34, s{sT2}
s_waitcnt lgkmcnt(0)
""")
for r in range(8): a(f"v_add_f32 v{CA+r}, v{CA+r}, v{40+r}")
for r in range(4): a(f"v_cvt_pk_bf16_f32 v{40+r}, v{CA+2*r}, v{CA+2*r+1}")
a(f"""
ds_write_b64 v2, v[40:41]
ds_write_b64 v2, v[42:43] offset:512
s_waitcnt lgkmcnt(0)
ds_read_b128 v[44:47], v3
s_waitcnt lgkmcnt(0)
buffer_store_dwordx4 v[44:47], v5, s[{S_WS}:{S_WS+3}], 0 offen sc1
s_branch L_attn
""")
a.label("L_noconv")
mid_hook()
a("s_waitcnt vmcnt(0)\ns_barrier")

a.label("L_attn")
stamp("a_start")
VA, VB_, SA, SB, OA, NM = 16, 24, 32, 48, 64, 80
vIDX = 98
vOaddr = 108
a(f"""
v_mov_b32 v{vRing}, v169
v_mov_b32 v110, 0
v_mov_b32 v111, 0
v_mov_b32 v{vDK}, v167
v_mov_b32 v{vDV}, v168
s_lshl_b32 s{sT0}, s{sRB}, 16
s_lshl_b32 s{sT1}, s{sJ}, 13
s_add_u32 s{sT0}, s{sT0}, s{sT1}
s_add_u32 s{sT0}, s{sT0}, {W_OF}
s_lshl_b32 s{sT1}, s{sW}, 10
s_add_u32 s{sT1}, s{sT0}, s{sT1}
v_lshlrev_b32 v4, 4, v1
v_add_u32 v5, s{sT1}, v4
v_mov_b32 v100, -1
v_mov_b32 v101, -1
v_mov_b32 v102, -1
v_mov_b32 v103, -1
v_mov_b32 v7, {LM}
ds_read_b96 v[104:106], v7
buffer_store_dwordx4 v[100:103], v5, s[{S_WS}:{S_WS+3}], 0 offen sc1
""")
a(f"""
s_and_b32 s{sT1}, s{sW}, 1
s_lshl_b32 s{sT1}, s{sT1}, 12
s_add_u32 s{sT0}, s{sT0}, s{sT1}
s_bfe_u32 s{sT1}, s{sW}, 0x10001
s_lshl_b32 s{sT1}, s{sT1}, 11
s_add_u32 s{sT0}, s{sT0}, s{sT1}
s_lshl_b32 s{sT1}, s{sKH}, 9
s_add_u32 s{sT0}, s{sT0}, s{sT1}
v_bfe_u32 v2, v1, 4, 1
v_lshlrev_b32 v2, 10, v2
v_lshrrev_b32 v3, 5, v1
v_lshl_add_u32 v2, v3, 8, v2
v_and_b32 v3, 15, v1
v_lshl_add_u32 v2, v3, 4, v2
v_add_u32 v{vOaddr}, s{sT0}, v2
v_mov_b32 v{vIDX}, 0xdddddddd
""")
for r in range(16): a(f"v_mov_b32 v{NM+r}, 0")
for r in range(16): a(f"v_mov_b32 v{OA+r}, 0")
a(f"""
s_waitcnt lgkmcnt(0)
v_mul_f32 v2, v104, v105
v_mov_b32 v3, {hex(f2u(292.0))}
v_cmp_le_f32 s[{sT0}:{sT0+1}], v2, v3
v_mov_b32 v3, {hex(f2u(2.0**60))}
v_cmp_le_f32 s[{sT2}:{sT2+1}], v106, v3
v_mov_b32 v3, {hex(f2u(2.0**-40))}
v_cmp_ge_f32 vcc, v106, v3
s_and_b64 s[{sT0}:{sT0+1}], s[{sT0}:{sT0+1}], s[{sT2}:{sT2+1}]
s_nop 0
s_and_b64 vcc, vcc, s[{sT0}:{sT0+1}]
""")
if OPT["force_slow"]:
    a("s_branch L_slow")
else:
    a("s_cbranch_vccz L_slow")
a.label("L_fast")
def QK(m, S, c=None):
    c = c or (f"v[{NM}:{NM+15}]" if m == 0 else f"v[{S}:{S+15}]")
    a(f"v_mfma_f32_32x32x16_bf16 v[{S}:{S+15}], v[{KF+4*m}:{KF+4*m+3}], v[{QF+4*m}:{QF+4*m+3}], {c}")
def PV(m, S, V):
    a(f"v_smfmac_f32_32x32x32_bf16 v[{OA}:{OA+15}], v[{V+4*m}:{V+4*m+3}], v[{S+8*m}:{S+8*m+7}], v{vIDX}")
def E(S, r0, r1):
    for r in range(r0, r1): a(f"v_exp_f32 v{S+r}, v{S+r}")
def rdK(m, pos): a(f"ds_read_b128 v[{KF+4*m}:{KF+4*m+3}], v{vRing} offset:{pos*2048+m*1024}")
def rdV(m, pos, V): a(f"ds_read_b128 v[{V+4*m}:{V+4*m+3}], v{vRing} offset:{8192+pos*2048+m*1024}")
def iteration(slot, last=False):
    even = (slot + 1) % 2 == 0
    X, Y = (SA, SB) if even else (SB, SA)
    Vx, Vy = (VA, VB_) if even else (VB_, VA)
    if last:
        E(X, 0, 10); PV(0, X, Vx); E(X, 10, 16); a("s_nop 1"); PV(1, X, Vx); return
    E(X, 0, 1); rdV(0, slot, Vy); E(X, 1, 2); rdV(1, slot, Vy); E(X, 2, 4)
    QK(0, Y); rdK(0, slot); E(X, 4, 8)
    QK(1, Y); rdK(1, slot); E(X, 8, 12)
    PV(0, X, Vx); E(X, 12, 16)
    a("s_waitcnt lgkmcnt(0)")
    if OPT["prio"]: a(f"s_setprio {[2,1,0,3][slot]}")
    else: a("s_nop 0")
    PV(1, X, Vx)
a(f"s_mov_b32 s{sOFF}, 8192\ns_mov_b32 s{sN}, 1")
ring_dma(vDK, vDV, f"s{sOFF}")
QK(0, SA); QK(1, SA)
rdV(0, 0, VA); rdV(1, 0, VA); rdK(0, 0); rdK(1, 0)
a("s_nop 7\ns_waitcnt lgkmcnt(0)")
if OPT["prio"]: a("s_setprio 2")
a("s_branch L_slot1")
a(".p2align 6")
a.label("L_loop")
a("s_waitcnt vmcnt(0)")
a("s_barrier")
a(f"v_xor_b32 v{vRing}, 0x10000, v{vRing}")
a(f"s_cmp_ge_u32 s{sN}, 4\ns_cbranch_scc1 L_spec")
a(f"s_cmp_eq_u32 s{sN}, 1\ns_cbranch_scc1 L_spec")
a.label("L_specret")
a(f"s_add_u32 s{sOFF}, s{sOFF}, 8192")
ring_dma(vDK, vDV, f"s{sOFF}")
a.label("L_nodma")
a(f"s_add_u32 s{sN}, s{sN}, 1")
iteration(0)
a.label("L_slot1")
iteration(1); iteration(2); iteration(3)
a(f"s_cmp_lt_u32 s{sN}, 8\ns_cbranch_scc1 L_loop")
iteration(0, last=True)
a("s_setprio 0")
stamp("a_end")
a("s_branch L_tail")

vFY, vFYa, vY, vQd, vOut, vYg = 109, 110, 100, 104, 111, 95 + 160
a.label("L_spec")
a(f"s_cmp_eq_u32 s{sN}, 1\ns_cbranch_scc0 L_sp4")
a(f"""
s_cmp_eq_u32 s{sW}, 0
s_cbranch_scc0 L_specret
s_lshl_b32 s{sT0}, s2, 4
s_add_u32 s{sT0}, s{sT0}, {W_FY}
v_mov_b32 v2, s{sT0}
v_mov_b32 v3, s{sTAG}
s_mov_b64 exec, 1
buffer_store_dword v3, v2, s[{S_WS}:{S_WS+3}], 0 offen sc1
s_mov_b64 exec, -1
s_branch L_specret
""")
a.label("L_sp4")
a(f"s_cmp_eq_u32 s{sN}, 4\ns_cbranch_scc0 L_sp5")
a(f"""
v_min_u32 v2, 27, v1
s_mul_i32 s{sT0}, s{sJ}, 28
v_add_u32 v2, s{sT0}, v2
v_and_b32 v3, 7, v1
v_lshlrev_b32 v3, 5, v3
s_and_b32 s{sT0}, s2, 31
v_add_u32 v3, s{sT0}, v3
v_cmp_gt_u32 vcc, 32, v1
s_nop 1
v_cndmask_b32 v2, v3, v2, vcc
v_lshlrev_b32 v2, 4, v2
v_add_u32 v{vFYa}, {W_FY}, v2
buffer_load_dword v{vFY}, v{vFYa}, s[{S_WS}:{S_WS+3}], 0 offen sc1
s_branch L_specret
""")
a.label("L_sp5")
a(f"s_cmp_eq_u32 s{sN}, 5\ns_cbranch_scc0 L_sp6")
poll("L_pfy", f"buffer_load_dword v{vFY}, v{vFYa}, s[{S_WS}:{S_WS+3}], 0 offen sc1", vFY, first_issued=True)
a(f"""
s_mul_i32 s{sT0}, s{sJ}, 56
s_lshl_b32 s{sT1}, s{sW}, 3
s_add_u32 s{sT0}, s{sT0}, s{sT1}
v_lshrrev_b32 v2, 3, v1
v_add_u32 v2, s{sT0}, v2
v_min_u32 v2, 447, v2
v_lshlrev_b32 v2, 12, v2
v_and_b32 v3, 7, v1
v_lshl_add_u32 v2, v3, 4, v2
s_lshl_b32 s{sT0}, s{sRB}, 7
s_add_u32 s{sT0}, s{sT0}, {W_YT}
v_add_u32 v2, s{sT0}, v2
buffer_load_dwordx4 v[{vY}:{vY+3}], v2, s[{S_WS}:{S_WS+3}], 0 offen sc1
s_branch L_specret
""")
a.label("L_sp6")
a(f"s_cmp_eq_u32 s{sN}, 6\ns_cbranch_scc0 L_nodma")
a(f"""
v_mul_u32_u24 v2, 9363, v0
v_lshrrev_b32 v2, 16, v2
v_mul_u32_u24 v3, 7, v2
v_sub_u32 v3, v0, v3
v_mul_u32_u24 v4, 896, v2
s_mul_i32 s{sT0}, s{sJ}, 112
v_lshlrev_b32 v5, 4, v3
v_add_u32 v5, s{sT0}, v5
v_add3_u32 v6, v4, v5, s{sR0}
buffer_load_dwordx4 v[{vQd}:{vQd+3}], v6, s[{S_Q}:{S_Q+3}], 0 offen
v_add_u32 v4, s{sR0}, v4
v_lshl_add_u32 v{vOut}, v4, 1, v5
v_lshrrev_b32 v4, 3, v2
v_xor_b32 v4, v4, v3
v_lshlrev_b32 v4, 4, v4
v_lshl_add_u32 v4, v3, 10, v4
v_and_b32 v5, 7, v2
v_lshl_add_u32 v4, v5, 1, v4
v_add_u32 v{vYg}, {LD}, v4
s_branch L_specret
""")

a.label("L_slow")
vMX = 2
def maxtile(S, first=False):
    a("s_nop 7\ns_nop 3")
    if first:
        a(f"v_max_f32 v{vMX}, v{S}, v{S+1}")
        rr = range(2, 16, 2)
    else:
        rr = range(0, 16, 2)
    for r in rr: a(f"v_max3_f32 v{vMX}, v{vMX}, v{S+r}, v{S+r+1}")
QK(0, SA, "0"); QK(1, SA); maxtile(SA, True)
for r in range(8): a(f"v_mov_b32 v{VA+r}, v{KF+r}")
a(f"s_mov_b32 s{sOFF}, 0\ns_mov_b32 s{sN}, 0")
a.label("L_sloop")
a(f"s_cmp_eq_u32 s{sN}, 7\ns_cbranch_scc1 L_snodma")
a(f"s_add_u32 s{sOFF}, s{sOFF}, 8192")
ring_dma(vDK, vDV, f"s{sOFF}")
a.label("L_snodma")
for pos in range(4):
    if pos == 3:
        a(f"s_cmp_eq_u32 s{sN}, 7\ns_cbranch_scc1 L_sskip")
    rdK(0, pos); rdK(1, pos); a("s_waitcnt lgkmcnt(0)")
    QK(0, SA, "0"); QK(1, SA); maxtile(SA)
a.label("L_sskip")
a(f"""
s_waitcnt vmcnt(0)
s_barrier
v_xor_b32 v{vRing}, 0x10000, v{vRing}
s_add_u32 s{sN}, s{sN}, 1
s_cmp_lt_u32 s{sN}, 8
s_cbranch_scc1 L_sloop
""")
ring_dma(vDK, vDV, "0")
a(f"""
v_mov_b32 v3, v{vMX}
s_lshl_b32 s{sT0}, s{sW}, 8
s_add_u32 s{sT0}, s{sT0}, {LW}
v_lshlrev_b32 v4, 2, v1
v_permlane32_swap_b32 v{vMX}, v3
v_add_u32 v4, s{sT0}, v4
v_max_f32 v{vMX}, v{vMX}, v3
v_xor_b32 v5, 1024, v4
ds_write_b32 v4, v{vMX}
""")
for r in range(8): a(f"v_mov_b32 v{KF+r}, v{VA+r}")
a(f"""
s_waitcnt vmcnt(0) lgkmcnt(0)
s_barrier
ds_read_b32 v3, v5
s_waitcnt lgkmcnt(0)
v_max_f32 v{vMX}, v{vMX}, v3
""")
for r in range(16): a(f"v_sub_f32 v{NM+r}, 0, v{vMX}")
a("s_nop 1\ns_branch L_fast")

a.label("L_tail")
a(f"""
s_mul_i32 s{sT0}, s{sW}, 2304
s_add_u32 s{sT0}, s{sT0}, {LX}
s_xor_b32 s{sT1}, s{sW}, 4
s_mul_i32 s{sT1}, s{sT1}, 2304
s_add_u32 s{sT1}, s{sT1}, {LX}
v_lshlrev_b32 v4, 4, v1
v_add_u32 v5, s{sT0}, v4
v_add_u32 v6, s{sT1}, v4
v_lshlrev_b32 v2, 2, v1
v_add_u32 v3, s{sT0}, v2
v_or_b32 v2, 128, v2
v_add_u32 v7, s{sT1}, v2
v_lshrrev_b32 v16, 3, v1
v_and_b32 v17, 7, v1
v_xor_b32 v17, s{sW}, v17
v_lshlrev_b32 v17, 4, v17
v_lshl_add_u32 v17, v16, 7, v17
s_lshl_b32 s{sT2}, s{sW}, 10
s_add_u32 s{sT2}, s{sT2}, {LD}
v_add_u32 v17, s{sT2}, v17
ds_write_b128 v17, v[{vY}:{vY+3}]
v_mov_b32 v18, v{OA+12}
v_mov_b32 v19, v{OA+12}
ds_write_b32 v3, v{OA+12} offset:2048
s_cmp_eq_u32 s{sKH}, 0
s_cbranch_scc1 L_or0
ds_write_b128 v5, v[{OA}:{OA+3}]
ds_write_b128 v5, v[{OA+4}:{OA+7}] offset:1024
""")
for r in range(8): a(f"v_mov_b32 v{OA+r}, v{OA+8+r}")
a("s_branch L_or1")
a.label("L_or0")
a(f"""
ds_write_b128 v5, v[{OA+8}:{OA+11}]
ds_write_b128 v5, v[{OA+12}:{OA+15}] offset:1024
""")
a.label("L_or1")
a(f"""
v_permlane32_swap_b32 v18, v19
s_lshl_b32 s{sT2}, s{sKH}, 5
s_sub_u32 s{sT2}, 64, s{sT2}
s_waitcnt lgkmcnt(0)
s_barrier
ds_read_b32 v20, v7 offset:2048
ds_read_b128 v[24:27], v6
ds_read_b128 v[28:31], v6 offset:1024
v_cmp_gt_u32 vcc, s{sT2}, v1
s_waitcnt lgkmcnt(2)
v_add_f32 v19, v19, v20
v_rcp_f32 v19, v19
s_waitcnt lgkmcnt(0)
v_cndmask_b32 v18, 0, v19, vcc
""")
for r in range(8): a(f"v_add_f32 v{OA+r}, v{OA+r}, v{24+r}")
for r in range(8): a(f"v_mul_f32 v{OA+r}, v{OA+r}, v{19 if r < 4 else 18}")
for r in range(4): a(f"v_cvt_pk_bf16_f32 v{24+r}, v{OA+2*r}, v{OA+2*r+1}")
for r in range(4): a(f"v_min_u32 v{24+r}, -2, v{24+r}")
a(f"""
s_nop 1
v_permlane32_swap_b32 v24, v26
v_permlane32_swap_b32 v25, v27
buffer_store_dwordx4 v[24:27], v{vOaddr}, s[{S_WS}:{S_WS+3}], 0 offen sc1
""")
stamp("t_ost")
a(f"s_cmp_eq_u32 s{sW}, 7\ns_cbranch_scc1 L_noa")
for e in range(8): a(f"v_mov_b32 v{32+e}, 0")
for e in range(8): a(f"ds_read_u16_d16_hi v{32+e}, v{vYg} offset:{e*128}")
for e in range(4):
    a(f"v_lshlrev_b32 v{40+2*e}, 16, v{vQd+e}\nv_and_b32 v{41+2*e}, {HI}, v{vQd+e}")
a("s_waitcnt lgkmcnt(0)")
for e in range(4): a(f"v_pk_mul_f32 {P(32+2*e)}, {P(32+2*e)}, {P(40+2*e)}")
for e in range(4): a(f"v_cvt_pk_bf16_f32 v{40+e}, v{32+2*e}, v{33+2*e}")
a(f"buffer_store_dwordx4 v[40:43], v{vOut}, s[{S_OUT}:{S_OUT+3}], 0 offen")
a.label("L_noa")
WF = 112; OF_ = 16; OACC = 48
a(f"""
v_bfe_u32 v2, v1, 2, 2
v_mul_u32_u24 v2, {PL}, v2
v_lshrrev_b32 v3, 4, v1
v_mul_u32_u24 v5, 224, v3
s_mul_i32 s{sT0}, s{sKH}, {56*112}
s_add_u32 s{sT0}, s{sT0}, {LB}
v_add3_u32 v2, v2, v5, s{sT0}
v_and_b32 v5, 3, v1
v_lshl_add_u32 v4, v5, 3, v2
v_and_b32 v5, 1, v1
v_lshl_add_u32 v5, v5, 3, v2
v_cmp_gt_u32 vcc, 48, v1
v_add_u32 v6, 112, v4
v_add_u32 v7, 112, v5
v_cndmask_b32 v6, v4, v6, vcc
v_cndmask_b32 v7, v5, v7, vcc
s_lshl_b32 s{sT0}, s{sRB}, 16
s_lshl_b32 s{sT1}, s{sKH}, 15
s_add_u32 s{sT0}, s{sT0}, s{sT1}
s_and_b32 s{sT1}, s{sW}, 3
s_lshl_b32 s{sT1}, s{sT1}, 10
s_add_u32 s{sT0}, s{sT0}, s{sT1}
s_add_u32 s{sT0}, s{sT0}, {W_OF}
v_lshlrev_b32 v2, 4, v1
v_add_u32 v2, s{sT0}, v2
""")
def wo_reads(h0, h1):
    for h in range(h0, h1):
        for ct in range(4):
            b = WF + 16*h + 4*ct
            v0_, v1_ = (4, 6) if ct < 3 else (5, 7)
            a(f"ds_read_b64_tr_b16 v[{b}:{b+1}], v{v0_} offset:{784*h + 32*ct}")
            a(f"ds_read_b64_tr_b16 v[{b+2}:{b+3}], v{v1_} offset:{784*h + 32*ct}")
def o_loads():
    for h in range(8):
        a(f"s_mov_b32 s{sT0}, {4096*h}")
        a(f"buffer_load_dwordx4 v[{OF_+4*h}:{OF_+4*h+3}], v2, s[{S_WS}:{S_WS+3}], s{sT0} offen sc1")
NPRE = OPT.get("npre", 4)
wo_reads(0, NPRE)
stamp("t_oissue")
o_loads()
wo_reads(NPRE, 8)
a("s_waitcnt lgkmcnt(0)")
def o_check(h, dst=3):
    b = OF_ + 4*h
    a(f"v_max3_u32 v{dst}, v{b}, v{b+1}, v{b+2}\nv_max_u32 v{dst}, v{dst}, v{b+3}")
def o_mfma(h):
    for ct in range(4):
        c = "0" if h == 0 else f"v[{OACC+4*ct}:{OACC+4*ct+3}]"
        a(f"v_mfma_f32_16x16x32_bf16 v[{OACC+4*ct}:{OACC+4*ct+3}], v[{WF+16*h+4*ct}:{WF+16*h+4*ct+3}], v[{OF_+4*h}:{OF_+4*h+3}], {c}")
for h in range(8):
    a(f"s_waitcnt vmcnt({7-h})")
    o_check(h)
    a("v_cmp_eq_u32 vcc, -1, v3\ns_nop 0\ns_cbranch_vccnz L_oretry")
    o_mfma(h)
a.label("L_odone")
stamp("t_omf")
a(f"""
s_lshl_b32 s{sT0}, s{sW}, 11
v_lshlrev_b32 v4, 4, v1
v_add_u32 v5, s{sT0}, v4
v_xor_b32 v6, 8192, v5
s_lshl_b32 s{sT0}, s{sW}, 10
s_add_u32 s{sT0}, s{sT0}, 16384
v_and_b32 v2, 15, v1
v_lshlrev_b32 v2, 6, v2
v_lshrrev_b32 v3, 4, v1
v_lshl_add_u32 v2, v3, 3, v2
v_add_u32 v2, s{sT0}, v2
v_add_u32 v3, s{sT0}, v4
s_cmp_eq_u32 s{sKH}, 0
s_cbranch_scc1 L_fr0
ds_write_b128 v5, v[{OACC}:{OACC+3}]
ds_write_b128 v5, v[{OACC+4}:{OACC+7}] offset:1024
""")
for r in range(8): a(f"v_mov_b32 v{OACC+r}, v{OACC+8+r}")
a("s_branch L_fr1")
a.label("L_fr0")
a(f"""
ds_write_b128 v5, v[{OACC+8}:{OACC+11}]
ds_write_b128 v5, v[{OACC+12}:{OACC+15}] offset:1024
""")
a.label("L_fr1")
a(f"""
s_and_b32 s{sT0}, s{sW}, 3
s_lshl_b32 s{sT0}, s{sT0}, 4
v_lshrrev_b32 v7, 2, v1
v_add_u32 v7, s{sT0}, v7
v_mul_u32_u24 v7, 1792, v7
v_and_b32 v16, 3, v1
v_lshl_add_u32 v7, v16, 4, v7
s_lshl_b32 s{sT0}, s{sR0}, 1
s_mul_i32 s{sT1}, s{sJ}, 112
s_add_u32 s{sT0}, s{sT0}, s{sT1}
s_lshl_b32 s{sT1}, s{sKH}, 6
s_add_u32 s{sT0}, s{sT0}, s{sT1}
s_add_u32 s{sT0}, s{sT0}, 896
v_add_u32 v7, s{sT0}, v7
s_sub_u32 s{sT1}, 4, s{sKH}
v_cmp_gt_u32 vcc, s{sT1}, v16
s_waitcnt lgkmcnt(0)
s_barrier
ds_read_b128 v[16:19], v6
ds_read_b128 v[20:23], v6 offset:1024
s_waitcnt lgkmcnt(0)
""")
for r in range(8): a(f"v_add_f32 v{OACC+r}, v{OACC+r}, v{16+r}")
for r in range(4): a(f"v_cvt_pk_bf16_f32 v{24+r}, v{OACC+2*r}, v{OACC+2*r+1}")
a(f"""
ds_write_b64 v2, v[24:25]
ds_write_b64 v2, v[26:27] offset:32
s_waitcnt lgkmcnt(0)
ds_read_b128 v[28:31], v3
s_and_b64 exec, exec, vcc
s_waitcnt lgkmcnt(0)
buffer_store_dwordx4 v[28:31], v7, s[{S_OUT}:{S_OUT+3}], 0 offen
s_mov_b64 exec, -1
""")
if OPT["diag"]:
    a("s_waitcnt vmcnt(0)")
    stamp("t_end")
    a(f"""
    s_lshl_b32 s{sT0}, s2, 3
    s_add_u32 s{sT0}, s{sT0}, s{sW}
    s_lshl_b32 s{sT0}, s{sT0}, 7
    s_add_u32 s{sT0}, s{sT0}, {W_DIAG}
    v_mov_b32 v2, s{sT0}
    s_mov_b64 exec, 1
    """)
    for k in range(22):
        a(f"v_mov_b32 v3, s{72+k}\nbuffer_store_dword v3, v2, s[{S_WS}:{S_WS+3}], 0 offen offset:{4*k}")
    a("s_waitcnt vmcnt(0)")
a("s_endpgm")
a.label("L_oretry")
a(f"s_mov_b32 s{sT5}, 0")
a.label("L_oretry2")
a("s_waitcnt vmcnt(0)\ns_sleep 2")
o_loads()
a("s_waitcnt vmcnt(0)")
for h in range(8): o_check(h, 64 + h)
a("v_max3_u32 v3, v64, v65, v66\nv_max3_u32 v3, v3, v67, v68\nv_max3_u32 v3, v3, v69, v70\nv_max_u32 v3, v3, v71")
a(f"""
v_cmp_eq_u32 vcc, -1, v3
s_add_u32 s{sT5}, s{sT5}, 1
s_cbranch_vccz L_oretry3
s_cmp_gt_u32 s{sT5}, {POLL_MAX}
s_cbranch_scc0 L_oretry2
""")
a.label("L_oretry3")
if OPT["diag"]: a(f"s_mov_b32 s89, s{sT5}")
for h in range(8): o_mfma(h)
a("s_branch L_odone")
a.label("L_end")
a("s_endpgm")

def mk(role, conv_on, setB, slow, j, retry, last):
    def decide(t, s, n):
        if t == "L_end": return False
        if t == "L_vpath": return role == "V"
        if t == "L_vgemm": return j >= 4
        if t in ("L_kvstore",): return not (j in (3, 7))
        if t == "L_kvst2": return j != 7
        if t in ("L_noxt", "L_noconv"): return not conv_on
        if t == "L_convB": return setB
        if t in ("L_cr0", "L_or0", "L_fr0"): return last
        if t == "L_slow": return slow
        if t.endswith("_ok"): return True
        if t.endswith("_ne") or t in ("L_nofa", "L_nofb", "L_noa"): return last
        if t == "L_loop": return n < 8
        if t == "L_sloop": return n < 2
        if t in ("L_snodma", "L_sskip"): return n == 2
        if t == "L_spec": return (n % 2 == 0) if last else n > 3
        if t in ("L_sp4", "L_sp5", "L_sp6"): return n % 2 == 1
        if t in ("L_specret",): return last
        if t == "L_nodma": return n % 2 == 0
        if t == "L_oretry": return retry and n == 1 and "vccnz" in s and (last or False)
        if t == "L_oretry3": return True
        if t == "L_oretry2": return False
        raise ValueError(t)
    return decide
probs = set(); nb = {}
import itertools
for role, conv_on, setB, slow, j, retry, last in itertools.product("MV", (0, 1), (0, 1), (0, 1), (0, 3, 4, 7), (0, 1), (0, 1)):
    seq = walk(a.lines, mk(role, conv_on, setB, slow, j, retry, last))
    for p in check_seq(seq, ""): probs.add(p)
    nb.setdefault((conv_on, slow), set()).add(sum(1 for l in seq if l.strip() == "s_barrier"))
for p in sorted(probs): print("HAZARD", p)

hdr = open("cdna_kernels/" + NAME + ".s.ref").read().split("; Override launch")[0]
out = hdr + f"""; @launch grid=(256,1,1) block=(512,1,1) lds={LDS_TOTAL}
.amdgcn_target "amdgcn-amd-amdhsa--gfx950"
.text
.globl {NAME}_kernel
.p2align 8
.type {NAME}_kernel,@function
""" + a.text() + f""".section .rodata,"a"
.p2align 6
.amdhsa_kernel {NAME}_kernel
  .amdhsa_next_free_vgpr 256
  .amdhsa_next_free_sgpr 102
  .amdhsa_accum_offset 256
  .amdhsa_group_segment_fixed_size 0
  .amdhsa_kernarg_size 112
  .amdhsa_user_sgpr_count 2
  .amdhsa_user_sgpr_kernarg_segment_ptr 1
  .amdhsa_system_sgpr_workgroup_id_x 1
  .amdhsa_float_denorm_mode_32 3
.end_amdhsa_kernel
"""
open(sys.argv[1], "w").write(out)
if OPT["diag"]:
    import json; json.dump(stamp_names, open(sys.argv[1] + ".stamps.json", "w"))
print("instructions:", sum(1 for l in a.lines if parse(l)), "barrier counts", nb)
```
